```python
import torch

def _softmax(x, axis=-1):
    return torch.softmax(x, dim=axis)
def _gelu(x):
    return torch.nn.functional.gelu(x, approximate="tanh")
def _silu(x):
    return torch.nn.functional.silu(x)
def _sigmoid(x):
    return torch.sigmoid(x)
def _layernorm(x, axis=-1, eps=1e-5):
    m = x.mean(dim=axis, keepdim=True)
    v = x.var(dim=axis, keepdim=True, unbiased=False)
    return (x - m) / torch.sqrt(v + eps)
def _scatter_add(tgt, idx, src, axis=0):
    return tgt.clone().index_add_(axis, idx, src)
def _segment_sum(src, seg, n):
    out = torch.zeros((n,) + src.shape[1:], dtype=src.dtype)
    return out.index_add_(0, seg, src)
def _pad(x, pw):
    flat = tuple(v for pair in reversed(pw) for v in pair)
    return torch.nn.functional.pad(x, flat)

kernel_name = 'recurrent_scan__compressed_kv_cla__geglu_ffn__prompt'

def setup_inputs():

    _w = (lambda a: (lambda t: t.to(torch.bfloat16) if t.is_floating_point() else t)(torch.as_tensor(a)))
    def _A_setup():
        B, H, Sq, Sk, D, M = 1, 32, 2048, 2048, 128, 512
        Dc = 4 * D
        return {
            "x": _w((lambda *s: torch.randn(*s, dtype=torch.bfloat16) * 0.05)(B, Sq, M)),
            "c_kv": _w((lambda *s: torch.randn(*s, dtype=torch.bfloat16) * 0.2)(B, Sk, Dc)),
            "w_q": _w((lambda *s: torch.randn(*s, dtype=torch.bfloat16) * 3.2)(M, H, D) * (M ** -0.5)),
            "w_uk": _w((lambda *s: torch.randn(*s, dtype=torch.bfloat16) * 3.2)(Dc, H, D) * (Dc ** -0.5)),
            "w_uv": _w((lambda *s: torch.randn(*s, dtype=torch.bfloat16) * 0.2)(Dc, H, D) * (Dc ** -0.5)),
            "w_o": _w((lambda *s: torch.randn(*s, dtype=torch.bfloat16) * 0.2)(H, D, M) * ((H * D) ** -0.5)),
        }
    _A_in = _A_setup()

    def _B_setup():
        B, S, D, F = 1, 2048, 512, 1376
        return {
            "x": _w((lambda *s: torch.randn(*s, dtype=torch.bfloat16) * 0.05)(B, S, D)),
            "w_gate": _w((lambda *s: torch.randn(*s, dtype=torch.bfloat16) * 0.1)(D, F)),
            "w_up": _w((lambda *s: torch.randn(*s, dtype=torch.bfloat16) * 0.1)(D, F)),
            "w_down": _w((lambda *s: torch.randn(*s, dtype=torch.bfloat16) * 0.1)(F, D)),
        }
    _B_in = _B_setup()

    return {
        "A_x": _A_in["x"],
        "A_c_kv": _A_in["c_kv"],
        "A_w_q": _A_in["w_q"],
        "A_w_uk": _A_in["w_uk"],
        "A_w_uv": _A_in["w_uv"],
        "A_w_o": _A_in["w_o"],
        "B_x": _B_in["x"],
        "B_w_gate": _B_in["w_gate"],
        "B_w_up": _B_in["w_up"],
        "B_w_down": _B_in["w_down"],
    }

def reference(A_x, A_c_kv, A_w_q, A_w_uk, A_w_uv, A_w_o, B_x, B_w_gate, B_w_up, B_w_down):
    def _A_ref(x, c_kv, w_q, w_uk, w_uv, w_o):
        B, Sq, M = x.shape[0], x.shape[1], x.shape[2]
        Sk = c_kv.shape[1]
        H, D = w_q.shape[1], w_q.shape[2]
        q = torch.einsum("bqm,mhd->bhqd", x, w_q)
        k = torch.einsum("bkc,chd->bhkd", c_kv, w_uk)
        v = torch.einsum("bkc,chd->bhkd", c_kv, w_uv)
        scores = torch.einsum("bhqd,bhkd->bhqk", q, k) * (D ** -0.5)
        off = Sk - Sq
        qi = torch.arange(Sq)[:, None]
        kj = torch.arange(Sk)[None, :]
        cmask = kj <= (qi + off)
        scores = torch.where(cmask[None, None], scores, -1e9)
        p = _softmax(scores, axis=-1)
        ctx = torch.einsum("bhqk,bhkd->bhqd", p, v)
        return torch.einsum("bhqd,hdm->bqm", ctx, w_o)

    def _B_ref(x, w_gate, w_up, w_down):
        return (_gelu(x @ w_gate) * (x @ w_up)) @ w_down

    x = A_x
    xn = _layernorm(x, axis=-1)
    s = _A_ref(xn, A_c_kv, A_w_q, A_w_uk, A_w_uv, A_w_o)
    g = _silu(_B_ref(xn, B_w_gate, B_w_up, B_w_down))
    return x + s * g
```

```python
import re

TRANS = ("v_exp_f32", "v_log_f32", "v_rcp_f32", "v_rsq_f32", "v_sqrt_f32", "v_sin_f32", "v_cos_f32")


def _regs(tok):
    tok = tok.strip()
    neg = tok.lstrip("-")
    if neg.startswith("abs(") or neg.startswith("|"):
        neg = neg.replace("abs(", "").replace(")", "").replace("|", "")
    tok = neg
    m = re.fullmatch(r"([vsa])(\d+)", tok)
    if m:
        return {tok}
    m = re.fullmatch(r"([vsa])\[(\d+):(\d+)\]", tok)
    if m:
        return {f"{m.group(1)}{i}" for i in range(int(m.group(2)), int(m.group(3)) + 1)}
    if tok in ("vcc", "vcc_lo", "vcc_hi"):
        return {"vcc"}
    if tok in ("exec", "exec_lo", "exec_hi"):
        return {"exec"}
    if tok == "m0":
        return {"m0"}
    return set()


class Ins:
    __slots__ = ("text", "op", "dst", "src", "kind", "srcC", "ab", "data")

    def __init__(self, text):
        self.text = text
        t = text.split(";")[0].strip()
        parts = t.split(None, 1)
        self.op = parts[0]
        rest = parts[1] if len(parts) > 1 else ""
        ops, cur, depth = [], "", 0
        for ch in rest:
            if ch in "[(":
                depth += 1
            if ch in "])":
                depth -= 1
            if ch == "," and depth == 0:
                ops.append(cur.strip())
                cur = ""
            else:
                cur += ch
        if cur.strip():
            ops.append(cur.strip())
        mods = ""
        if ops:
            sp = ops[-1].split(None, 1)
            if len(sp) > 1:
                ops[-1] = sp[0]
                mods = sp[1]
        op = self.op
        self.dst, self.src = set(), set()
        self.srcC, self.ab, self.data = set(), set(), set()
        R = [_regs(o) for o in ops]
        if op.startswith("v_mfma"):
            self.kind = "mfma"
            self.dst = R[0]
            self.ab = R[1] | R[2]
            self.srcC = R[3]
            self.src = self.ab | self.srcC
        elif op.startswith("v_permlane") and "swap" in op:
            self.kind = "permlane"
            self.dst = R[0] | R[1]
            self.src = R[0] | R[1]
        elif op.startswith("v_"):
            self.kind = "trans" if op.replace("_e32", "").replace("_e64", "") in TRANS else "valu"
            self.dst = set(R[0])
            self.src = set().union(*R[1:]) if len(R) > 1 else set()
            if op.startswith(("v_fmac", "v_dot2c", "v_pk_fmac")):
                self.src |= R[0]
            if op.startswith(("v_add_co", "v_sub_co", "v_addc_co", "v_subb_co")):
                self.dst |= R[1]
                self.src = set().union(*R[2:])
            if "dpp" in op or "row_" in mods or "quad_perm" in mods:
                self.kind = "dpp"
            if op.startswith("v_readfirstlane") or op.startswith("v_readlane"):
                self.kind = "readlane"
        elif op.startswith("buffer_load") or op.startswith("global_load"):
            self.kind = "vmem"
            if " lds" in (" " + mods) or "_lds_" in op:
                self.kind = "dma"
                self.src = set().union(*R) | {"m0"}
            else:
                self.dst = R[0]
                self.src = set().union(*R[1:])
        elif op.startswith("buffer_store") or op.startswith("buffer_atomic"):
            self.kind = "vstore"
            self.src = set().union(*R)
            self.data = R[0]
            if op.startswith("buffer_atomic") and "sc0" in mods:
                self.dst = R[0]
        elif op.startswith("global_store") or op.startswith("global_atomic"):
            self.kind = "vstore"
            self.src = set().union(*R)
            self.data = R[1]
        elif op.startswith("ds_read") or op.startswith("ds_bpermute") or op.startswith("ds_swizzle"):
            self.kind = "ds"
            self.dst = R[0]
            self.src = set().union(*R[1:])
        elif op.startswith("ds_"):
            self.kind = "ds"
            self.src = set().union(*R)
        elif op.startswith("s_nop"):
            self.kind = "nop"
        elif op.startswith(("s_cmp", "s_cbranch", "s_branch", "s_waitcnt", "s_barrier", "s_endpgm",
                            "s_setprio", "s_sleep", "buffer_inv", "buffer_wbl2", "s_bitcmp")):
            self.kind = "salu"
            self.src = set().union(*R) if R else set()
        elif op.startswith("s_"):
            self.kind = "salu"
            self.dst = R[0] if R else set()
            self.src = set().union(*R[1:]) if len(R) > 1 else set()
            if "saveexec" in op:
                self.dst |= {"exec"}
        else:
            self.kind = "other"

    def states(self):
        if self.kind == "nop":
            return int(self.text.split()[1], 0) + 1
        return 1


VALUISH = ("valu", "trans", "dpp", "permlane", "readlane")


def check_hazards(ins_list, name=""):
    probs = []
    n = len(ins_list)
    for i, a in enumerate(ins_list):
        if a.kind in ("nop", "other", "label"):
            continue
        dist = 0
        for j in range(i + 1, min(n, i + 40)):
            b = ins_list[j]
            if b.kind == "label":
                continue
            need = 0
            why = ""
            vd = {r for r in a.dst if r[0] in "va"}
            sd = {r for r in a.dst if r[0] == "s" or r == "vcc"}
            if a.kind in VALUISH:
                if b.kind == "mfma" and vd & b.src:
                    need, why = 2, "VALU->MFMA operand"
                if b.kind == "permlane" and vd & b.src:
                    need, why = max(need, 2), "VALU->permlane"
                if b.kind == "dpp" and vd & b.src:
                    need, why = max(need, 2), "VALU->DPP"
                if b.kind == "readlane" and vd & b.src:
                    need, why = max(need, 1), "VALU->readlane"
                if a.kind == "trans" and b.kind in ("valu", "dpp", "permlane", "readlane") and vd & b.src:
                    need, why = max(need, 1), "trans->VALU"
                if sd and b.kind in VALUISH and sd & b.src:
                    need, why = max(need, 2), "VALU sgpr->VALU read"
                if sd and b.kind in ("vmem", "dma", "vstore") and sd & b.src:
                    need, why = max(need, 5), "VALU sgpr->VMEM"
            if a.kind == "mfma":
                passes = 8 if "32x32x16" in a.op else 4
                big = {8: 12, 4: 8}[passes]
                if b.kind == "mfma":
                    if a.dst & b.ab:
                        need, why = big, "MFMA D->MFMA A/B"
                    elif a.dst & b.srcC and a.dst != b.srcC:
                        need, why = {8: 10, 4: 6}[passes], "MFMA D->MFMA C overlap"
                    elif a.dst & b.dst and not (a.dst == b.srcC):
                        need, why = big, "MFMA D->MFMA D WAW (conservative)"
                elif b.kind in VALUISH or b.kind in ("vmem", "vstore", "ds", "dma"):
                    if a.dst & (b.src | b.dst):
                        need, why = big, "MFMA D->VALU/VMEM/DS"
                if b.kind in VALUISH and (a.srcC & b.dst):
                    need, why = max(need, {8: 7, 4: 3}[passes]), why or "MFMA C WAR"
            if a.kind == "salu" and "m0" in a.dst and b.kind == "dma":
                need, why = max(need, 1), "m0->DMA"
            if a.kind == "vstore" and ("x4" in a.op or "x3" in a.op) and b.kind in VALUISH and a.data & b.dst:
                need, why = max(need, 2), "store data WAR"
            if need > dist:
                probs.append(f"{name}: [{i}] {a.text.strip()}  ->  [{j}] {b.text.strip()} : {why} need {need} have {dist}")
            dist += b.states()
            if dist >= 20:
                break
    return probs


class Asm:
    def __init__(self):
        self.out = []
        self.ins = []

    def __call__(self, text):
        for line in text.strip("\n").split("\n"):
            s = line.strip()
            if not s:
                continue
            if s.startswith(";"):
                self.out.append("  " + s)
                continue
            self.out.append("  " + s)
            self.ins.append(Ins(s))

    def label(self, name):
        self.out.append(f"{name}:")
        lab = Ins("s_nop 0")
        lab.kind = "label"
        self.ins.append(lab)

    def raw(self, text):
        self.out.append(text)

    def text(self):
        return "\n".join(self.out) + "\n"


def vr(base, n=1):
    return f"v{base}" if n == 1 else f"v[{base}:{base + n - 1}]"


def sr(base, n=1):
    return f"s{base}" if n == 1 else f"s[{base}:{base + n - 1}]"
```

```python
from asmlib import Asm, vr
import gen as G

vL16 = 1
vK = 2
vV = 3
vL0, vL1 = 4, 5
vMax = 6
vQ4 = 7
vDD = 8
vNinf = 9
vE = [10, 11, 12, 13, 14, 15]
NEGM = 16
QF = 32
P = 64
RING = 80
SB = [112, 144]
O = 176
vT = 240

sKs, sVs, sO, sQs = 44, 48, 52, 56
sWave, sGrp, sWq, sH, sI = 3, 60, 61, 62, 63
sT, sN, sNA = 64, 65, 66
sKoff, sVoff = 67, 68
sKm0, sVm0 = 69, 70
sTmp, sTmp2 = 71, 72
sRb = 73
sKrd, sVrd = 74, 75
sMsk = [76, 78, 80, 82]


def gen_attn():
    a = Asm()
    name = "attn_kernel"
    G.khead(a, name)
    a("s_cmp_ge_u32 s2, 256")
    a("s_cbranch_scc1 L_at_exit")
    ST = G.Stamper(a, 86, sO)
    ST.init()
    ST.stamp(0)
    a("s_load_dwordx2 s[40:41], s[0:1], 96")
    a("v_lshrrev_b32 v12, 6, v0")
    a("v_and_b32 v13, 63, v0")
    a(f"v_readfirstlane_b32 s{sWave}, v12")
    a(f"v_lshlrev_b32 v{vL16}, 4, v13")
    a(f"s_lshr_b32 s{sGrp}, s{sWave}, 2")
    a(f"s_and_b32 s{sWq}, s{sWave}, 3")
    a(f"s_and_b32 s{sTmp}, s2, 7")
    a(f"s_lshr_b32 s{sTmp2}, s2, 3")
    a(f"s_lshl_b32 s{sH}, s{sTmp}, 2")
    a(f"s_and_b32 s{sTmp}, s{sTmp2}, 3")
    a(f"s_add_u32 s{sH}, s{sH}, s{sTmp}")
    a(f"s_lshr_b32 s{sI}, s{sTmp2}, 2")
    a(f"s_sub_u32 s{sTmp}, 15, s{sI}")
    a(f"s_lshl_b32 s{sNA}, s{sTmp}, 1")
    a(f"s_add_u32 s{sNA}, s{sNA}, 2")
    a(f"s_cmp_eq_u32 s{sGrp}, 0")
    a(f"s_cselect_b32 s{sTmp}, s{sTmp}, s{sI}")
    a(f"s_lshl_b32 s{sN}, s{sTmp}, 1")
    a(f"s_add_u32 s{sN}, s{sN}, 2")
    a(f"s_lshl_b32 s{sRb}, s{sTmp}, 2")
    a(f"s_add_u32 s{sRb}, s{sRb}, s{sWq}")
    a("v_and_b32 v14, 31, v13")
    a("v_lshrrev_b32 v15, 5, v13")
    a("v_lshlrev_b32 v15, 2, v15")
    a(f"s_lshl_b32 s{sTmp}, s{sRb}, 5")
    a(f"v_add_u32 v14, s{sTmp}, v14")
    a(f"v_sub_u32 v{vQ4}, v14, v15")
    a(f"v_mov_b32 v{vNinf}, 0xff800000")
    a(f"v_mov_b32 v{vL0}, 0")
    a(f"v_mov_b32 v{vL1}, 0")
    a("s_waitcnt lgkmcnt(0)")
    ST.stamp(7)
    G.srd(a, sO, 40, G.WS_SIZE)
    a(f"s_lshl_b32 s{sTmp}, s{sH}, 19")
    a(f"s_add_u32 s{sTmp2}, s{sTmp}, {G.WS_KF}")
    a(f"s_add_u32 s{sKs}, s40, s{sTmp2}")
    a(f"s_addc_u32 s{sKs+1}, s41, 0")
    a(f"s_lshl_b32 s{sKs+2}, s{sNA}, 14")
    a(f"s_mov_b32 s{sKs+3}, 0x00020000")
    a(f"s_add_u32 s{sTmp2}, s{sTmp}, {G.WS_VF}")
    a(f"s_add_u32 s{sVs}, s40, s{sTmp2}")
    a(f"s_addc_u32 s{sVs+1}, s41, 0")
    a(f"s_lshl_b32 s{sVs+2}, s{sNA}, 14")
    a(f"s_mov_b32 s{sVs+3}, 0x00020000")
    a(f"s_lshl_b32 s{sTmp}, s{sH}, 6")
    a(f"s_add_u32 s{sTmp}, s{sTmp}, s{sRb}")
    a(f"s_lshl_b32 s{sTmp}, s{sTmp}, 13")
    a(f"s_add_u32 s{sTmp}, s{sTmp}, {G.WS_QF}")
    a(f"s_add_u32 s{sTmp2}, s{sTmp}, 4096")
    for ks in range(8):
        so = sTmp if ks < 4 else sTmp2
        a(f"buffer_load_dwordx4 {vr(QF+4*ks,4)}, v{vL16}, s[{sO}:{sO+3}], s{so} offen offset:{(ks%4)*1024}")
    a(f"s_lshl_b32 s{sKoff}, s{sWq}, 12")
    a(f"s_mov_b32 s{sVoff}, s{sKoff}")
    a(f"s_mov_b32 s{sKm0}, s{sKoff}")
    a(f"s_add_u32 s{sVm0}, s{sKoff}, 65536")

    def load_k():
        a(f"s_mov_b32 m0, s{sKm0}")
        a(f"s_add_u32 s{sKm0}, s{sKm0}, 16384")
        for n in range(4):
            a(f"buffer_load_dwordx4 v{vL16}, s[{sKs}:{sKs+3}], s{sKoff} offen offset:{n*1024} lds")
        a(f"s_and_b32 s{sKm0}, s{sKm0}, 0xffff")
        a(f"s_add_u32 s{sKoff}, s{sKoff}, 16384")

    def load_v():
        a(f"s_mov_b32 m0, s{sVm0}")
        a(f"s_add_u32 s{sVm0}, s{sVm0}, 16384")
        for n in range(4):
            a(f"buffer_load_dwordx4 v{vL16}, s[{sVs}:{sVs+3}], s{sVoff} offen offset:{n*1024} lds")
        a(f"s_and_b32 s{sVm0}, s{sVm0}, 0xffff")
        a(f"s_or_b32 s{sVm0}, s{sVm0}, 65536")
        a(f"s_add_u32 s{sVoff}, s{sVoff}, 16384")

    a(f"s_cmp_eq_u32 s{sGrp}, 0")
    a("s_cbranch_scc1 L_at_noload0")
    for f in (load_k, load_k, load_v, load_k, load_v, load_k, load_v):
        f()
    a("s_waitcnt vmcnt(20)")
    a("s_branch L_at_p1")
    a.label("L_at_noload0")
    a("s_waitcnt vmcnt(0)")
    a.label("L_at_p1")
    ST.stamp(8)
    for r in range(64):
        a(f"v_mov_b32 v{O+r}, 0")
    a(f"v_mov_b32 v{vK}, v{vL16}")
    a(f"v_add_u32 v{vV}, 65536, v{vL16}")
    a(f"s_mov_b32 s{sKrd}, 0")
    a(f"s_mov_b32 s{sVrd}, 65536")
    a("s_barrier")
    ST.stamp(1)

    def kread(slot, f):
        return f"ds_read_b128 {vr(RING+4*slot,4)}, v{vK} offset:{f*1024}"

    def vread(slot, f):
        return f"ds_read_b128 {vr(RING+4*slot,4)}, v{vV} offset:{f*1024}"

    adv_k = [f"s_add_u32 s{sKrd}, s{sKrd}, 16384", f"s_and_b32 s{sKrd}, s{sKrd}, 0xffff",
             f"v_add_u32 v{vK}, s{sKrd}, v{vL16}"]
    adv_v = [f"s_add_u32 s{sVrd}, s{sVrd}, 16384", f"s_and_b32 s{sVrd}, s{sVrd}, 0xffff",
             f"s_or_b32 s{sVrd}, s{sVrd}, 65536", f"v_add_u32 v{vV}, s{sVrd}, v{vL16}"]

    def qk_mfma(idx, pn, first_tile=False):
        kvb, ks = idx // 8, idx % 8
        d = vr(SB[pn] + 16 * kvb, 16)
        c = d if ks else ("0" if first_tile else vr(NEGM, 16))
        return f"v_mfma_f32_32x32x16_bf16 {d}, {vr(RING+4*(idx%8),4)}, {vr(QF+4*ks,4)}, {c}"

    def pv_mfma(j):
        kstep, db = j // 4, j % 4
        d = vr(O + 16 * db, 16)
        return f"v_mfma_f32_32x32x16_bf16 {d}, {vr(RING+4*(j%8),4)}, {vr(P+4*kstep,4)}, {d}"

    def softmax_ops(p):
        ops = []
        for e2 in range(16):
            t0, t1 = vE[(2 * e2) % 6], vE[(2 * e2 + 1) % 6]
            s0 = SB[p] + 2 * e2
            ops.append((f"v_exp_f32 v{t0}, v{s0}", 8))
            ops.append((f"v_exp_f32 v{t1}, v{s0+1}", 8))
            ops.append((f"v_add_f32 v{vL0}, v{vL0}, v{t0}", 4))
            ops.append((f"v_add_f32 v{vL1}, v{vL1}, v{t1}", 4))
            ops.append((f"v_cvt_pk_bf16_f32 v{P+e2}, v{t0}, v{t1}", 4))
        return ops

    def max_ops(pn):
        s = SB[pn]
        ops = [f"v_max3_f32 v{vMax}, v{s}, v{s+1}, v{s+2}"]
        for k in range(3, 31, 2):
            ops.append(f"v_max3_f32 v{vMax}, v{vMax}, v{s+k}, v{s+k+1}")
        ops.append(f"v_max_f32 v{vMax}, v{vMax}, v{s+31}")
        return ops

    outl = []

    def mask_block(lbl, ret, pn):
        def emit():
            a.label(lbl)
            a(f"s_add_u32 s{sTmp}, s{sT}, 1")
            a(f"s_lshl_b32 s{sTmp}, s{sTmp}, 6")
            a(f"v_subrev_u32 v{vDD}, s{sTmp}, v{vQ4}")
            for e0 in range(0, 32, 4):
                for k in range(4):
                    e = e0 + k
                    kvb, r = e // 16, e % 16
                    const = 32 * kvb + 8 * (r // 4) + r % 4
                    a(f"v_cmp_gt_i32 s[{sMsk[k]}:{sMsk[k]+1}], {const}, v{vDD}")
                for k in range(4):
                    e = e0 + k
                    a(f"v_cndmask_b32 v{SB[pn]+e}, v{SB[pn]+e}, v{vNinf}, s[{sMsk[k]}:{sMsk[k]+1}]")
            a(f"s_branch {ret}")
        outl.append(emit)

    def cross_max():
        a(f"v_mov_b32 v{vT}, v{vMax}")
        a("s_nop 1")
        a(f"v_permlane32_swap_b32 v{vMax}, v{vT}")
        a(f"v_max_f32 v{vMax}, v{vMax}, v{vT}")

    def rescale_block(lbl, ret, pn):
        def emit():
            a.label(lbl)
            a("s_nop 15")
            a("s_nop 3")
            cross_max()
            a(f"v_max_f32 v{vMax}, 0, v{vMax}")
            a(f"v_sub_f32 v{vT+1}, 0, v{vMax}")
            a(f"v_exp_f32 v{vT+1}, v{vT+1}")
            for r in range(32):
                a(f"v_sub_f32 v{SB[pn]+r}, v{SB[pn]+r}, v{vMax}")
            for r in range(16):
                a(f"v_sub_f32 v{NEGM+r}, v{NEGM+r}, v{vMax}")
            for r in range(64):
                a(f"v_mul_f32 v{O+r}, v{O+r}, v{vT+1}")
            a(f"v_mul_f32 v{vL0}, v{vL0}, v{vT+1}")
            a(f"v_mul_f32 v{vL1}, v{vL1}, v{vT+1}")
            a("s_nop 1")
            a(f"s_branch {ret}")
        outl.append(emit)

    def barrier_and_load(tag):
        a(f"s_cmp_eq_u32 s{sGrp}, 0")
        a(f"s_cbranch_scc1 L_at_bA_{tag}")
        a("s_waitcnt vmcnt(12)")
        a("s_barrier")
        load_k()
        load_v()
        a(f"s_branch L_at_bJ_{tag}")
        a.label(f"L_at_bA_{tag}")
        a("s_barrier")
        a.label(f"L_at_bJ_{tag}")

    a(f"s_mov_b32 s{sT}, -1")
    for f in range(8):
        a(kread(f, f))
    for idx in range(16):
        if idx % 4 == 0:
            a("s_waitcnt lgkmcnt(4)")
        a(qk_mfma(idx, 0, True))
        if idx < 8:
            a(kread(idx, idx + 8))
        else:
            if idx == 8:
                for s in adv_k:
                    a(s)
            a(kread(idx - 8, idx - 8))
    a("s_nop 15")
    a(f"s_cmp_eq_u32 s{sN}, 2")
    a("s_cbranch_scc1 L_at_mask_f")
    a.label("L_at_maskret_f")
    mask_block("L_at_mask_f", "L_at_maskret_f", 0)
    for s in max_ops(0):
        a(s)
    cross_max()
    for r in range(32):
        a(f"v_sub_f32 v{SB[0]+r}, v{SB[0]+r}, v{vMax}")
    for r in range(16):
        a(f"v_sub_f32 v{NEGM+r}, 0, v{vMax}")
    a(f"s_mov_b32 s{sT}, 0")
    ST.stamp(2)

    def body(p, tag):
        pn = 1 - p
        barrier_and_load(tag)
        sm = softmax_ops(p)
        mx = max_ops(pn)
        gaps = [[] for _ in range(32)]
        cost = [0] * 32
        for g in range(32):
            if g < 8:
                gaps[g].append(kread(g, g + 8))
            elif g < 24:
                gaps[g].append(vread(g % 8, g - 8))
            else:
                gaps[g].append(kread(g % 8, g - 24))
            cost[g] += 4
            if g % 4 == 3:
                cost[g] += 4
        gaps[10] += adv_k
        cost[10] += 12
        gaps[28] += adv_v
        cost[28] += 16
        gaps[18] += [f"s_add_u32 s{sTmp}, s{sT}, 3", f"s_cmp_ge_u32 s{sTmp}, s{sN}",
                     f"s_cbranch_scc1 L_at_mask_{tag}", ("label", f"L_at_maskret_{tag}")]
        cost[18] += 12
        mask_block(f"L_at_mask_{tag}", f"L_at_maskret_{tag}", pn)
        mg = [19, 20, 21, 22, 23, 24, 25, 26, 27, 27, 28, 29, 29, 30, 30, 30]
        budget = 24
        g = 0
        mi = 0
        placed_max = {k: [] for k in range(32)}
        for o, gg in zip(mx, mg):
            placed_max[gg].append(o)
            cost[gg] += 4
        k = 0
        for g in range(32):
            while k < len(sm):
                op, c = sm[k]
                chunk = (k // 5) // 4
                deadline = 16 + 4 * chunk - 2
                if cost[g] + c <= budget or g >= deadline:
                    gaps[g].append(op)
                    cost[g] += c
                    k += 1
                else:
                    break
            gaps[g] += placed_max[g]
        assert k == len(sm)
        gaps[30].append(f"v_cmp_lt_f32 vcc, 0x41000000, v{vMax}")
        for idx in range(32):
            if idx % 4 == 0:
                a("s_waitcnt lgkmcnt(4)")
            a(qk_mfma(idx, pn) if idx < 16 else pv_mfma(idx - 16))
            for s in gaps[idx]:
                if isinstance(s, tuple):
                    a.label(s[1])
                else:
                    a(s)
        a(f"s_add_u32 s{sT}, s{sT}, 1")
        a(f"s_cbranch_vccnz L_at_resc_{tag}")
        a.label(f"L_at_rescret_{tag}")
        rescale_block(f"L_at_resc_{tag}", f"L_at_rescret_{tag}", pn)
        return cost

    a.label("L_at_loop")
    c0 = body(0, "e")
    a(f"s_add_u32 s{sTmp}, s{sT}, 1")
    a(f"s_cmp_ge_u32 s{sTmp}, s{sN}")
    a("s_cbranch_scc1 L_at_final")
    body(1, "o")
    a("s_branch L_at_loop")
    print("attn gap costs:", c0, sum(c0))

    a.label("L_at_final")
    ST.stamp(3)
    barrier_and_load("z")
    a("s_waitcnt lgkmcnt(0)")
    for f in range(8):
        a(vread(f, f))
    sm = softmax_ops(1)
    for op, c in sm[:20]:
        a(op)
    k = 20
    for j in range(16):
        if j % 4 == 0:
            a("s_waitcnt lgkmcnt(4)" if j < 12 else "s_waitcnt lgkmcnt(0)")
            if j == 0:
                a("s_nop 0")
        a(pv_mfma(j))
        if j < 8:
            a(vread(j, j + 8))
        n = 7 if j % 4 < 2 else (6 if j % 4 == 2 else 0)
        for op, c in sm[k:k + n] if k < len(sm) else []:
            a(op)
        k += n
        if j % 4 == 3:
            a("s_nop 0")
    assert k >= len(sm)
    a(f"s_add_u32 s{sT}, s{sT}, 1")
    ST.stamp(4)
    a(f"v_add_f32 v{vL0}, v{vL0}, v{vL1}")
    a(f"v_mov_b32 v{vT}, v{vL0}")
    a("s_nop 1")
    a(f"v_permlane32_swap_b32 v{vL0}, v{vT}")
    a(f"v_add_f32 v{vL0}, v{vL0}, v{vT}")
    a(f"v_rcp_f32 v{vL0}, v{vL0}")
    a(f"s_lshl_b32 s{sTmp}, s{sRb}, 5")
    a(f"s_add_u32 s{sTmp}, s{sTmp}, s{sH}")
    a(f"s_lshl_b32 s{sTmp}, s{sTmp}, 13")
    a(f"s_add_u32 s{sTmp}, s{sTmp}, {G.WS_CF}")
    a(f"s_add_u32 s{sTmp2}, s{sTmp}, 4096")
    a("s_nop 7")
    for db in range(4):
        for u in range(2):
            b = O + 16 * db + 8 * u
            q = SB[0] + 4 * (db * 2 + u)
            for r in range(8):
                a(f"v_mul_f32 v{b+r}, v{b+r}, v{vL0}")
            for j in range(4):
                a(f"v_cvt_pk_bf16_f32 v{q+j}, v{b+2*j}, v{b+2*j+1}")
            f = db * 2 + u
            so = sTmp if f < 4 else sTmp2
            a(f"buffer_store_dwordx4 {vr(q,4)}, v{vL16}, s[{sO}:{sO+3}], s{so} offen offset:{(f%4)*1024}")
    ST.stamp(5)
    a(f"s_cmp_eq_u32 s{sGrp}, 0")
    a("s_cbranch_scc1 L_at_end")
    a.label("L_at_ldloop")
    a(f"s_cmp_ge_u32 s{sT}, s{sNA}")
    a("s_cbranch_scc1 L_at_end")
    a("s_waitcnt vmcnt(12)")
    a("s_barrier")
    load_k()
    load_v()
    a(f"s_add_u32 s{sT}, s{sT}, 1")
    a("s_branch L_at_ldloop")
    a.label("L_at_end")
    if G.STAMP:
        a("s_waitcnt vmcnt(0)")
    ST.stamp(6)
    ST.dump(sWave, 2)
    a.label("L_at_exit")
    a("s_endpgm")
    for e in outl:
        e()
    a.raw(G.KD.format(name=name, vgpr=256, sgpr=102, acc=256))
    return a, f"; @launch kernel={name} grid=(256,1,1) block=(512,1,1) lds=131072"
```

```python
import math
import struct
import sys

from asmlib import Asm, check_hazards, vr, sr

NAME = "recurrent_scan__compressed_kv_cla__geglu_ffn__prompt"

WS_XN = 0
WS_QF = 2 << 20
WS_KF = WS_QF + (16 << 20)
WS_VF = WS_KF + (16 << 20)
WS_CF = WS_VF + (16 << 20)
WS_HF = WS_CF + (16 << 20)
WS_END = WS_HF + 64 * 86 * 1024
WS_SIZE = 268435456


def f32(x):
    return "0x%08x" % struct.unpack("<I", struct.pack("<f", x))[0]


QSCALE = math.log2(math.e) / math.sqrt(128.0)

KD = """.section .rodata,"a"
.p2align 6
.amdhsa_kernel {name}
  .amdhsa_next_free_vgpr {vgpr}
  .amdhsa_next_free_sgpr {sgpr}
  .amdhsa_accum_offset {acc}
  .amdhsa_group_segment_fixed_size 0
  .amdhsa_kernarg_size 104
  .amdhsa_user_sgpr_count 2
  .amdhsa_user_sgpr_kernarg_segment_ptr 1
  .amdhsa_system_sgpr_workgroup_id_x 1
.end_amdhsa_kernel
.text
"""


def khead(a, name):
    a.raw(f".globl {name}\n.p2align 8\n.type {name},@function\n{name}:")


def srd(a, d, lo, nbytes, off_lo=None):
    if off_lo:
        a(f"s_add_u32 s{d}, s{lo}, {off_lo}")
        a(f"s_addc_u32 s{d+1}, s{lo+1}, 0")
    else:
        a(f"s_mov_b32 s{d}, s{lo}")
        a(f"s_mov_b32 s{d+1}, s{lo+1}")
    a(f"s_mov_b32 s{d+2}, {nbytes}")
    a(f"s_mov_b32 s{d+3}, 0x00020000")


import os
STAMP = int(os.environ.get("STAMP", "0"))
WS_STAMP = 128 << 20


class Stamper:
    def __init__(self, a, base, sws):
        self.a, self.base, self.n, self.sws = a, base, 0, sws

    def stamp(self, i):
        if not STAMP:
            return
        a = self.a
        a(f"s_memtime s[{self.base+14}:{self.base+15}]")
        a("s_waitcnt lgkmcnt(0)")
        a(f"s_mov_b32 s{self.base+i}, s{self.base+14}")

    def init(self):
        if not STAMP:
            return
        for i in range(12):
            self.a(f"s_mov_b32 s{self.base+i}, 0")
        self.rt(10)

    def rt(self, i):
        if not STAMP:
            return
        a = self.a
        a(f"s_memrealtime s[{self.base+14}:{self.base+15}]")
        a("s_waitcnt lgkmcnt(0)")
        a(f"s_mov_b32 s{self.base+i}, s{self.base+14}")

    def dump(self, swave, kidx):
        if not STAMP:
            return
        a = self.a
        self.rt(11)
        a(f"s_lshl_b32 s{self.base+14}, s2, 3")
        a(f"s_add_u32 s{self.base+14}, s{self.base+14}, s{swave}")
        a(f"s_lshl_b32 s{self.base+14}, s{self.base+14}, 6")
        a(f"s_add_u32 s{self.base+14}, s{self.base+14}, {WS_STAMP + kidx*(1<<20)}")
        a("v_mov_b32 v0, 0")
        for i in range(12):
            a(f"v_mov_b32 v1, s{self.base+i}")
            a(f"buffer_store_dword v1, v0, s[{self.sws}:{self.sws+3}], s{self.base+14} offen offset:{4*i}")
            a("s_nop 1")


def reduce64(a, v, t):
    a(f"s_nop 1")
    a(f"v_add_f32_dpp v{v}, v{v}, v{v} quad_perm:[1,0,3,2] row_mask:0xf bank_mask:0xf")
    a(f"s_nop 1")
    a(f"v_add_f32_dpp v{v}, v{v}, v{v} quad_perm:[2,3,0,1] row_mask:0xf bank_mask:0xf")
    a(f"s_nop 1")
    a(f"v_add_f32_dpp v{v}, v{v}, v{v} row_half_mirror row_mask:0xf bank_mask:0xf")
    a(f"s_nop 1")
    a(f"v_add_f32_dpp v{v}, v{v}, v{v} row_mirror row_mask:0xf bank_mask:0xf")
    a(f"v_mov_b32 v{t}, v{v}")
    a(f"s_nop 1")
    a(f"v_permlane16_swap_b32 v{v}, v{t}")
    a(f"v_add_f32 v{v}, v{v}, v{t}")
    a(f"v_mov_b32 v{t}, v{v}")
    a(f"s_nop 1")
    a(f"v_permlane32_swap_b32 v{v}, v{t}")
    a(f"v_add_f32 v{v}, v{v}, v{t}")


def round_bf16(a, v):
    a(f"v_cvt_pk_bf16_f32 v{v}, v{v}, v{v}")
    a(f"v_lshlrev_b32 v{v}, 16, v{v}")


def ln_body(a, vin, vt):
    x = [vt + i for i in range(8)]
    s, t, m, r, e = vt + 8, vt + 9, vt + 10, vt + 11, vt + 12
    for i in range(4):
        a(f"v_lshlrev_b32 v{x[2*i]}, 16, v{vin+i}")
        a(f"v_and_b32 v{x[2*i+1]}, 0xffff0000, v{vin+i}")
    a(f"v_add_f32 v{s}, v{x[0]}, v{x[1]}")
    for i in range(2, 8):
        a(f"v_add_f32 v{s}, v{s}, v{x[i]}")
    reduce64(a, s, t)
    a(f"v_mul_f32 v{m}, {f32(1.0/512)}, v{s}")
    a(f"v_sub_f32 v{t}, v{x[0]}, v{m}")
    a(f"v_mul_f32 v{s}, v{t}, v{t}")
    for i in range(1, 8):
        a(f"v_sub_f32 v{t}, v{x[i]}, v{m}")
        a(f"v_fmac_f32 v{s}, v{t}, v{t}")
    reduce64(a, s, t)
    a(f"v_mul_f32 v{s}, {f32(1.0/512)}, v{s}")
    round_bf16(a, m)
    round_bf16(a, s)
    a(f"v_add_f32 v{s}, {f32(1e-5)}, v{s}")
    round_bf16(a, s)
    a(f"v_sqrt_f32 v{s}, v{s}")
    a("s_nop 0")
    round_bf16(a, s)
    a(f"v_rcp_f32 v{r}, v{s}")
    for i in range(8):
        a(f"v_sub_f32 v{x[i]}, v{x[i]}, v{m}")
        round_bf16(a, x[i])
    for i in range(8):
        a(f"v_mul_f32 v{t}, v{x[i]}, v{r}")
        a(f"v_fma_f32 v{e}, -v{t}, v{s}, v{x[i]}")
        a(f"v_fma_f32 v{x[i]}, v{e}, v{r}, v{t}")
    for i in range(4):
        a(f"v_cvt_pk_bf16_f32 v{vin+i}, v{x[2*i]}, v{x[2*i+1]}")


def gen_ln():
    a = Asm()
    name = "ln_kernel"
    khead(a, name)
    a("s_cmp_ge_u32 s2, 256")
    a("s_cbranch_scc1 L_ln_end")
    a("s_load_dwordx2 s[4:5], s[0:1], 0")
    a("s_load_dwordx2 s[6:7], s[0:1], 96")
    a("s_lshl_b32 s3, s2, 13")
    a("v_lshlrev_b32 v1, 4, v0")
    a("v_add_u32 v1, s3, v1")
    a("s_waitcnt lgkmcnt(0)")
    srd(a, 8, 4, 2 << 20)
    srd(a, 12, 6, 2 << 20, WS_XN)
    a("buffer_load_dwordx4 v[4:7], v1, s[8:11], 0 offen")
    a("s_waitcnt vmcnt(0)")
    ln_body(a, 4, 8)
    a("buffer_store_dwordx4 v[4:7], v1, s[12:15], 0 offen")
    a.label("L_ln_end")
    a("s_endpgm")
    a.raw(KD.format(name=name, vgpr=24, sgpr=24, acc=24))
    return a, f"; @launch kernel={name} grid=(256,1,1) block=(512,1,1) lds=0"


def load_ptrs(a):
    a("s_load_dwordx16 s[16:31], s[0:1], 0")
    a("s_load_dwordx8 s[32:39], s[0:1], 64")
    a("s_load_dwordx2 s[40:41], s[0:1], 96")


P_X, P_C, P_WQ, P_WUK, P_WUV, P_WO, P_BX, P_WG, P_WU, P_WD, P_OUT, P_DBG, P_WS = [16 + 2 * i for i in range(13)]


def gen_proj():
    a = Asm()
    name = "proj_kernel"
    khead(a, name)
    ACC = 128
    FX = [32, 56]
    FW = [48, 72]
    vXa = [2, 3, 4, 5]
    vWa = 6
    vXd = [7, 8]
    vWd = 9
    vWdG = 10
    vSt = 11
    TMP = 80
    sX, sW0, sW1, sO = 44, 48, 52, 56
    sXo, sWo0, sWo1, s4st, s64st, sM0X, sM0W = 60, 61, 62, 63, 64, 65, 66
    sT = 67
    sOut1, sOut2, sType2 = 70, 71, 72
    sRt, sQ, sXcd, sWr, sWc = 73, 74, 75, 76, 77

    a("s_cmp_ge_u32 s2, 256")
    a("s_cbranch_scc1 L_pj_exit")
    ST = Stamper(a, 86, sO)
    ST.init()
    ST.stamp(0)
    load_ptrs(a)
    a("v_lshrrev_b32 v12, 6, v0")
    a("v_and_b32 v1, 63, v0")
    a("v_readfirstlane_b32 s3, v12")
    a("v_and_b32 v13, 31, v1")
    a("v_lshrrev_b32 v14, 5, v1")
    a(f"s_lshr_b32 s{sWr}, s3, 2")
    a(f"s_and_b32 s{sWc}, s3, 3")
    a(f"s_and_b32 s{sXcd}, s2, 7")
    a(f"s_lshr_b32 s{sT}, s2, 3")
    a(f"s_and_b32 s{sRt}, s{sT}, 7")
    a(f"s_lshr_b32 s{sQ}, s{sT}, 3")
    a("v_bfe_u32 v15, v13, 1, 3")
    a(f"s_lshl_b32 s{sT}, s{sWr}, 14")
    a("v_lshlrev_b32 v16, 7, v13")
    a(f"v_add_u32 v16, s{sT}, v16")
    for ks in range(4):
        a(f"v_add_u32 v17, {2*ks}, v14")
        a("v_xor_b32 v17, v17, v15")
        a(f"v_lshl_add_u32 v{vXa[ks]}, v17, 4, v16")
    a("v_bfe_u32 v17, v1, 2, 2")
    a("v_and_b32 v18, 3, v1")
    a("v_bfe_u32 v19, v1, 4, 1")
    a("v_lshlrev_b32 v20, 12, v14")
    a("v_lshl_add_u32 v20, v17, 6, v20")
    a("v_lshl_add_u32 v20, v19, 5, v20")
    a("v_lshl_add_u32 v20, v18, 3, v20")
    a(f"s_lshl_b32 s{sT}, s{sWc}, 8")
    a(f"s_add_u32 s{sT}, s{sT}, 65536")
    a(f"v_add_u32 v{vWa}, s{sT}, v20")
    a("v_lshrrev_b32 v20, 3, v1")
    a("v_and_b32 v21, 7, v1")
    a("v_lshrrev_b32 v22, 4, v1")
    a(f"s_lshl_b32 s{sT}, s3, 15")
    for e in range(2):
        a(f"v_add_u32 v23, {4*e}, v22")
        a("v_xor_b32 v23, v23, v21")
        a(f"v_add_u32 v24, {8*e}, v20")
        a("v_lshlrev_b32 v24, 10, v24")
        a("v_lshl_add_u32 v24, v23, 4, v24")
        a(f"v_add_u32 v{vXd[e]}, s{sT}, v24")
    a(f"s_lshl_b32 s{sT}, s3, 3")
    a(f"v_add_u32 v23, s{sT}, v17")
    a("v_lshlrev_b32 v24, 6, v22")
    a("v_lshl_add_u32 v24, v18, 4, v24")
    a(f"v_lshl_add_u32 v{vWd}, v23, 13, v24")
    a(f"v_mul_u32_u24 v23, 2752, v23")
    a(f"v_add_u32 v{vWdG}, v23, v24")
    a(f"v_lshlrev_b32 v{vSt}, 4, v1")
    a(f"s_lshl_b32 s{sM0X}, s3, 12")
    a(f"s_add_u32 s{sM0W}, s{sM0X}, 65536")
    a("s_waitcnt lgkmcnt(0)")
    srd(a, sO, P_WS, WS_SIZE)
    srd(a, sX, P_C, 2 << 20)
    a(f"s_cmp_lt_u32 s{sQ}, 2")
    a(f"s_cselect_b32 s{sW0}, s{P_WUK}, s{P_WUV}")
    a(f"s_cselect_b32 s{sW0+1}, s{P_WUK+1}, s{P_WUV+1}")
    a(f"s_mov_b32 s{sW0+2}, {4 << 20}")
    a(f"s_mov_b32 s{sW0+3}, 0x00020000")
    a(f"s_mov_b32 s{sW1}, s{sW0}")
    a(f"s_mov_b32 s{sW1+1}, s{sW0+1}")
    a(f"s_mov_b32 s{sW1+2}, {4 << 20}")
    a(f"s_mov_b32 s{sW1+3}, 0x00020000")
    sHp = 78
    a(f"s_and_b32 s{sT}, s{sQ}, 1")
    a(f"s_lshl_b32 s{sHp}, s{sXcd}, 1")
    a(f"s_add_u32 s{sHp}, s{sHp}, s{sT}")
    a(f"s_lshl_b32 s{sXo}, s{sRt}, 18")
    a(f"s_lshl_b32 s{sWo0}, s{sHp}, 9")
    a(f"s_add_u32 s{sWo1}, s{sWo0}, 256")
    a(f"s_mov_b32 s{s4st}, {4*8192}")
    a(f"s_mov_b32 s{s64st}, {64*8192}")

    def dma_groups(buf):
        g = []
        for n in range(4):
            g.append([f"s_add_u32 m0, s{sM0X}, {buf*32768 + n*1024}",
                      f"s_add_u32 s{sT}, s{sXo}, {(n//2)*16384}",
                      f"buffer_load_dwordx4 v{vXd[n%2]}, s[{sX}:{sX+3}], s{sT} offen lds"])
        for e in range(2):
            for hf in range(2):
                so = sWo1 if hf else sWo0
                sw = sW1 if hf else sW0
                if e:
                    mid = f"s_add_u32 s{sT}, s{so}, s{s4st}"
                    use = sT
                else:
                    mid = "s_nop 0"
                    use = so
                g.append([f"s_add_u32 m0, s{sM0W}, {buf*32768 + e*2048 + hf*1024}", mid,
                          f"buffer_load_dwordx4 v{vWd}, s[{sw}:{sw+3}], s{use} offen lds"])
        g.append([f"s_add_u32 s{sXo}, s{sXo}, 128", f"s_add_u32 s{sWo0}, s{sWo0}, s{s64st}",
                  f"s_add_u32 s{sWo1}, s{sWo1}, s{s64st}"])
        return g

    for buf in range(2):
        for g in dma_groups(buf):
            for s in g:
                a(s)

    sRb = 79
    a(f"s_lshl_b32 s{sRb}, s{sRt}, 3")
    a(f"s_lshl_b32 s{sT}, s{sWr}, 2")
    a(f"s_add_u32 s{sRb}, s{sRb}, s{sT}")
    sQK = 80
    a(f"s_lshl_b32 s{sQK}, s{sHp}, 7")
    a(f"s_add_u32 s{sQK}, s{sQK}, s{sRb}")
    a(f"s_lshl_b32 s{sQK}, s{sQK}, 3")
    a(f"s_lshl_b32 s{sT}, s{sWc}, 1")
    a(f"s_add_u32 s{sQK}, s{sQK}, s{sT}")
    a(f"s_lshl_b32 s{sQK}, s{sQK}, 10")
    sV = 81
    a(f"s_lshl_b32 s{sV}, s{sHp}, 6")
    a(f"s_lshr_b32 s{sT}, s{sRb}, 1")
    a(f"s_add_u32 s{sV}, s{sV}, s{sT}")
    a(f"s_lshl_b32 s{sV}, s{sV}, 4")
    a(f"s_add_u32 s{sV}, s{sV}, s{sWc}")
    a(f"s_lshl_b32 s{sV}, s{sV}, 10")
    a(f"s_add_u32 s{sV}, s{sV}, {WS_VF}")
    sJt = 82
    a(f"s_and_b32 s{sJt}, s{sQ}, 1")
    a(f"s_lshl_b32 s{sJt}, s{sJt}, 3")
    a(f"s_add_u32 s{sJt}, s{sJt}, s{sXcd}")
    sH = 83
    a(f"s_mul_i32 s{sH}, s{sRb}, 86")
    a(f"s_lshl_b32 s{sT}, s{sJt}, 2")
    a(f"s_add_u32 s{sT}, s{sT}, s{sWc}")
    sFbk = 84
    a(f"s_mov_b32 s{sFbk}, s{sT}")
    a(f"s_lshl_b32 s{sT}, s{sT}, 1")
    a(f"s_add_u32 s{sH}, s{sH}, s{sT}")
    a(f"s_lshl_b32 s{sH}, s{sH}, 10")
    a(f"s_add_u32 s{sH}, s{sH}, {WS_HF}")

    def frag_reads(setid, st, ks):
        buf = st % 2
        r = []
        for tb in range(4):
            r.append(f"ds_read_b128 {vr(FX[setid]+4*tb,4)}, v{vXa[ks]} offset:{buf*32768 + tb*4096}")
        for fb in range(2):
            for rd in range(2):
                r.append(f"ds_read_b64_tr_b16 {vr(FW[setid]+4*fb+2*rd,2)}, v{vWa} "
                         f"offset:{buf*32768 + ks*8192 + rd*2048 + fb*1024}")
        return [r[4], r[5], r[0], r[6], r[7], r[1], r[2], r[3]]

    def main_loop(form, switch_code, first=True):
        for s in frag_reads(0, 0, 0):
            a(s)
        for st in range(8):
            for ks in range(4):
                step = st * 4 + ks
                cur = step % 2
                fill = []
                if ks == 3:
                    nxt_load = st + 2
                    if st < 7:
                        a("s_waitcnt vmcnt(0) lgkmcnt(0)")
                        a("s_barrier")
                    elif switch_code is not None:
                        a("s_waitcnt lgkmcnt(0)")
                        a("s_barrier")
                    else:
                        a("s_waitcnt lgkmcnt(0)")
                    if st < 7:
                        fill += [[s] for s in frag_reads(1 - cur, st + 1, 0)]
                    if nxt_load <= 7 or switch_code is not None:
                        if nxt_load == 8:
                            fill.append(list(switch_code))
                        fill += dma_groups(st % 2)
                else:
                    a("s_waitcnt lgkmcnt(0)")
                    fill += [[s] for s in frag_reads(1 - cur, st, ks + 1)]
                mf = []
                for tb in range(4):
                    for fb in range(2):
                        d = vr(ACC + 16 * (tb * 2 + fb), 16)
                        x = vr(FX[cur] + 4 * tb, 4)
                        w = vr(FW[cur] + 4 * fb, 4)
                        c = "0" if step == 0 else d
                        if form == "T":
                            mf.append(f"v_mfma_f32_32x32x16_bf16 {d}, {w}, {x}, {c}")
                        else:
                            mf.append(f"v_mfma_f32_32x32x16_bf16 {d}, {x}, {w}, {c}")
                per = [[] for _ in range(8)]
                for i, f in enumerate(fill):
                    per[min(7, i * 8 // max(len(fill), 8))].append(f) if len(fill) > 8 else per[i].append(f)
                for i in range(8):
                    a(mf[i])
                    for f in per[i]:
                        for s in f:
                            a(s)
                if first and ks == 2 and st % 2 == 1:
                    ST.stamp(2 + st // 2)

    tq = [0]

    def tmpquad():
        q = TMP + 4 * (tq[0] % 8)
        tq[0] += 1
        return q

    def store_block(blk, sbase, const, uoff_imm):
        base = ACC + 16 * blk
        for u in range(2):
            q = tmpquad()
            for j in range(4):
                a(f"v_cvt_pk_bf16_f32 v{q+j}, v{base+8*u+2*j}, v{base+8*u+2*j+1}")
            if uoff_imm < 4096:
                if u == 0:
                    a(f"s_add_u32 s{sT}, s{sbase}, {const}")
                a(f"buffer_store_dwordx4 {vr(q,4)}, v{vSt}, s[{sO}:{sO+3}], s{sT} offen offset:{u*uoff_imm}")
            else:
                a(f"s_add_u32 s{sT}, s{sbase}, {const + u*uoff_imm}")
                a(f"buffer_store_dwordx4 {vr(q,4)}, v{vSt}, s[{sO}:{sO+3}], s{sT} offen")

    def epi_qk(wsbase, scale):
        a("s_nop 15")
        for tb in range(4):
            for fb in range(2):
                blk = tb * 2 + fb
                if scale:
                    for r in range(0, 16, 2):
                        b = ACC + 16 * blk + r
                        a(f"v_pk_mul_f32 v[{b}:{b+1}], v[{b}:{b+1}], v[12:13]")
                store_block(blk, sQK, wsbase + tb * 8192 + fb * 524288, 1024)

    def epi_v():
        a("s_nop 15")
        for tb in range(4):
            for fb in range(2):
                store_block(tb * 2 + fb, sV, fb * 524288 + (tb // 2) * 16384 + (tb % 2) * 8192, 4096)

    def epi_gu():
        a("s_nop 15")
        c1 = -2.0 * math.sqrt(2.0 / math.pi) * math.log2(math.e)
        c2 = c1 * 0.044715
        a(f"s_mov_b32 s{sT+1}, {f32(c2)}")
        a(f"v_mov_b32 v12, {f32(c1)}")
        for tb in range(4):
            g = ACC + 16 * (tb * 2)
            u_ = ACC + 16 * (tb * 2 + 1)
            for r0 in range(0, 16, 4):
                t = [16 + i for i in range(4)]
                for i in range(4):
                    a(f"v_mul_f32 v{t[i]}, v{g+r0+i}, v{g+r0+i}")
                for i in range(4):
                    a(f"v_fma_f32 v{t[i]}, v{t[i]}, s{sT+1}, v12")
                for i in range(4):
                    a(f"v_mul_f32 v{t[i]}, v{t[i]}, v{g+r0+i}")
                for i in range(4):
                    a(f"v_exp_f32 v{t[i]}, v{t[i]}")
                for i in range(4):
                    a(f"v_add_f32 v{t[i]}, 1.0, v{t[i]}")
                for i in range(4):
                    a(f"v_rcp_f32 v{t[i]}, v{t[i]}")
                for i in range(4):
                    a(f"v_mul_f32 v{g+r0+i}, v{g+r0+i}, v{u_+r0+i}")
                for i in range(4):
                    a(f"v_mul_f32 v{g+r0+i}, v{g+r0+i}, v{t[i]}")
            store_block(tb * 2, sH, tb * 86 * 1024, 1024)

    sw_q = [
        f"s_add_u32 s{sX}, s{P_WS}, {WS_XN}", f"s_addc_u32 s{sX+1}, s{P_WS+1}, 0",
        f"s_mov_b32 s{sW0}, s{P_WQ}", f"s_mov_b32 s{sW0+1}, s{P_WQ+1}",
        f"s_mov_b32 s{sW1}, s{P_WQ}", f"s_mov_b32 s{sW1+1}, s{P_WQ+1}",
        f"s_lshl_b32 s{sXo}, s{sRt}, 18",
        f"s_lshl_b32 s{sWo0}, s{sHp}, 9",
        f"s_add_u32 s{sWo1}, s{sWo0}, 256",
    ]
    sw_gu = [
        f"s_add_u32 s{sX}, s{P_WS}, {WS_XN}", f"s_addc_u32 s{sX+1}, s{P_WS+1}, 0",
        f"s_mov_b32 s{sW0}, s{P_WG}", f"s_mov_b32 s{sW0+1}, s{P_WG+1}",
        f"s_mov_b32 s{sW0+2}, {512*2752}",
        f"s_mov_b32 s{sW1}, s{P_WU}", f"s_mov_b32 s{sW1+1}, s{P_WU+1}",
        f"s_mov_b32 s{sW1+2}, {512*2752}",
        f"s_lshl_b32 s{sXo}, s{sRt}, 18",
        f"s_lshl_b32 s{sWo0}, s{sJt}, 8",
        f"s_mov_b32 s{sWo1}, s{sWo0}",
        f"s_mov_b32 s{s4st}, {4*2752}",
        f"s_mov_b32 s{s64st}, {64*2752}",
        f"v_mov_b32 v{vWd}, v{vWdG}",
    ]

    a("s_waitcnt vmcnt(8)")
    a("s_barrier")
    ST.stamp(1)
    a(f"s_cmp_lt_u32 s{sQ}, 2")
    a("s_cbranch_scc0 L_pj_v")
    main_loop("T", sw_q)
    epi_qk(WS_KF, False)
    ST.stamp(6)
    a("s_waitcnt vmcnt(24)")
    a("s_barrier")
    ST.stamp(7)
    main_loop("T", None, False)
    ST.stamp(8)
    a(f"v_mov_b32 v12, {f32(QSCALE)}")
    a(f"v_mov_b32 v13, {f32(QSCALE)}")
    epi_qk(WS_QF, True)
    a("s_branch L_pj_end")
    a.label("L_pj_v")
    a(f"s_cmp_lt_u32 s{sJt}, 11")
    a("s_cbranch_scc0 L_pj_vonly")
    main_loop("N", sw_gu)
    epi_v()
    ST.stamp(6)
    a("s_waitcnt vmcnt(24)")
    a("s_barrier")
    ST.stamp(7)
    main_loop("T", None, False)
    ST.stamp(8)
    a(f"s_cmp_lt_u32 s{sFbk}, 43")
    a("s_cbranch_scc0 L_pj_end")
    epi_gu()
    a("s_branch L_pj_end")
    a.label("L_pj_vonly")
    main_loop("N", None)
    epi_v()
    a.label("L_pj_end")
    if STAMP:
        a("s_waitcnt vmcnt(0)")
    ST.stamp(9)
    ST.dump(3, 1)
    a.label("L_pj_exit")
    a("s_endpgm")
    a.raw(KD.format(name=name, vgpr=256, sgpr=102, acc=256))
    return a, f"; @launch kernel={name} grid=(256,1,1) block=(512,1,1) lds=131072"


def main():
    out = sys.argv[1] if len(sys.argv) > 1 else f"cdna_kernels/{NAME}.s"
    import importlib
    gens = [gen_ln, gen_proj]
    try:
        import gen_attn
        gens.append(gen_attn.gen_attn)
    except ImportError:
        pass
    try:
        import gen_out
        gens.append(gen_out.gen_out)
    except ImportError:
        pass
    parts = [g() for g in gens]
    hdr = ["; recurrent_scan__compressed_kv_cla__geglu_ffn__prompt : generated by work/gen.py"]
    hdr += [p[1] for p in parts]
    txt = "\n".join(hdr) + "\n" + '.amdgcn_target "amdgcn-amd-amdhsa--gfx950"\n.text\n'
    nprob = 0
    for a, l in parts:
        probs = check_hazards(a.ins, l.split("kernel=")[1].split()[0])
        for p in probs[:30]:
            print("HAZARD", p)
        nprob += len(probs)
        txt += a.text()
    open(out, "w").write(txt)
    print(f"wrote {out}: {len(txt)} bytes, {sum(len(p[0].ins) for p in parts)} instrs, {nprob} hazards")


if __name__ == "__main__":
    main()
```
